```python
import torch

def _softmax(x, axis=-1):
    return torch.softmax(x, dim=axis)
def _gelu(x):
    return torch.nn.functional.gelu(x, approximate="tanh")
def _silu(x):
    return torch.nn.functional.silu(x)
def _sigmoid(x):
    return torch.sigmoid(x)
def _layernorm(x, axis=-1, eps=1e-5):
    m = x.mean(dim=axis, keepdim=True)
    v = x.var(dim=axis, keepdim=True, unbiased=False)
    return (x - m) / torch.sqrt(v + eps)
def _scatter_add(tgt, idx, src, axis=0):
    return tgt.clone().index_add_(axis, idx, src)
def _segment_sum(src, seg, n):
    out = torch.zeros((n,) + src.shape[1:], dtype=src.dtype)
    return out.index_add_(0, seg, src)
def _pad(x, pw):
    flat = tuple(v for pair in reversed(pw) for v in pair)
    return torch.nn.functional.pad(x, flat)

kernel_name = 'gated_mix__sliding_block_cached__mixer_channel_mlp__decode'

def setup_inputs():

    _w = (lambda a: (lambda t: t.to(torch.bfloat16) if t.is_floating_point() else t)(torch.as_tensor(a)))
    def _A_setup():
        B, Sq, D = 8, 1, 576
        Hq, Hkv, Sk, Dh = 32, 16, 8192, 128
        assert Hq % Hkv == 0, (Hq, Hkv)
        return {
            "x": _w((lambda *s: torch.randn(*s, dtype=torch.bfloat16) * 0.05)(B, Sq, D)),
            "k_cache": _w((lambda *s: torch.randn(*s, dtype=torch.bfloat16) * 6.4)(B, Hkv, Sk, Dh)),
            "v_cache": _w((lambda *s: torch.randn(*s, dtype=torch.bfloat16) * 0.4)(B, Hkv, Sk, Dh)),
            "wq": _w((lambda *s: torch.randn(*s, dtype=torch.bfloat16) * 6.4)(D, Hq * Dh) * (D ** -0.5)),
            "wo": _w((lambda *s: torch.randn(*s, dtype=torch.bfloat16) * 0.4)(Hq * Dh, D) * ((Hq * Dh) ** -0.5)),
        }
    _A_in = _A_setup()

    def _B_setup():
        B, S, D, F = 8, 1, 576, 4608
        return {
            "x": _w((lambda *s: torch.randn(*s, dtype=torch.bfloat16) * 0.05)(B, S, D)),
            "w1": _w((lambda *s: torch.randn(*s, dtype=torch.bfloat16) * 0.8)(D, F) * (D ** -0.5)),
            "b1": _w((lambda *s: torch.randn(*s, dtype=torch.bfloat16) * 0.8)(F)),
            "w2": _w((lambda *s: torch.randn(*s, dtype=torch.bfloat16) * 0.05)(F, D) * (F ** -0.5)),
            "b2": _w((lambda *s: torch.randn(*s, dtype=torch.bfloat16) * 0.05)(D)),
        }
    _B_in = _B_setup()

    return {
        "A_x": _A_in["x"],
        "A_k_cache": _A_in["k_cache"],
        "A_v_cache": _A_in["v_cache"],
        "A_wq": _A_in["wq"],
        "A_wo": _A_in["wo"],
        "B_x": _B_in["x"],
        "B_w1": _B_in["w1"],
        "B_b1": _B_in["b1"],
        "B_w2": _B_in["w2"],
        "B_b2": _B_in["b2"],
        "gate_w": _w((lambda *s: torch.randn(*s, dtype=torch.bfloat16) * 0.05)(576) * 16.0),
    }

def reference(A_x, A_k_cache, A_v_cache, A_wq, A_wo, B_x, B_w1, B_b1, B_w2, B_b2, gate_w):
    def _A_ref(x, k_cache, v_cache, wq, wo):
        B, Sq, D = x.shape
        Hq, Dh = 32, 128
        Hkv, Sk = k_cache.shape[1], k_cache.shape[2]
        W = min(4096, max(256, Sk // 4))
        rep = Hq // Hkv
        q = (lambda x, *d: x.permute(*d))((x @ wq).reshape(B, Sq, Hq, Dh), 0, 2, 1, 3)
        k = (lambda x, n, axis: torch.repeat_interleave(x, n, dim=axis))(k_cache[:, :, Sk - W:, :], rep, axis=1)
        v = (lambda x, n, axis: torch.repeat_interleave(x, n, dim=axis))(v_cache[:, :, Sk - W:, :], rep, axis=1)
        scores = torch.einsum("bhqd,bhkd->bhqk", q, k) * (Dh ** -0.5)
        p = _softmax(scores, axis=-1)
        o = torch.einsum("bhqk,bhkd->bhqd", p, v)
        return (lambda x, *d: x.permute(*d))(o, 0, 2, 1, 3).reshape(B, Sq, Hq * Dh) @ wo

    def _B_ref(x, w1, b1, w2, b2):
        y = _layernorm(x, axis=-1)
        h = _gelu(torch.einsum("bsd,df->bsf", y, w1) + b1)
        return torch.einsum("bsf,fd->bsd", h, w2) + b2

    x = A_x
    g = _sigmoid((x * gate_w).sum(-1, keepdims=True))
    a = _A_ref(x, A_k_cache, A_v_cache, A_wq, A_wo)
    b = _B_ref(x, B_w1, B_b1, B_w2, B_b2)
    return g * a + (1 - g) * b
```

```python
import re

TRANS = ("v_exp_f32", "v_log_f32", "v_rcp_f32", "v_rsq_f32", "v_sqrt_f32", "v_sin_f32", "v_cos_f32")

def regs_of(tok):
    tok = tok.strip()
    tok = tok.lstrip("-")
    m = re.fullmatch(r"abs\((.*)\)|\|(.*)\|", tok)
    if m:
        tok = m.group(1) or m.group(2)
    m = re.fullmatch(r"([vs])(\d+)", tok)
    if m:
        return [(m.group(1), int(m.group(2)))]
    m = re.fullmatch(r"([vs])\[(\d+):(\d+)\]", tok)
    if m:
        return [(m.group(1), i) for i in range(int(m.group(2)), int(m.group(3)) + 1)]
    if tok == "vcc":
        return [("s", "vcc_lo"), ("s", "vcc_hi")]
    if tok in ("vcc_lo", "vcc_hi"):
        return [("s", tok)]
    if tok == "exec":
        return [("s", "exec")]
    return []

class Asm:
    def __init__(self):
        self.lines = []
        self.pos = 0
        self.st = {}
        self.snaps = {}
        self.nnop = 0

    def raw(self, s):
        self.lines.append(s)

    def comment(self, s):
        self.lines.append("  ; " + s)

    def label(self, name):
        for snap in self.snaps.pop(name, []):
            for k, d in snap.items():
                p = self.pos - d
                if k not in self.st or self.st[k] < p:
                    self.st[k] = p
        self.lines.append(name + ":")

    def _need(self, cls, regs, ws):
        n = 0
        for r in regs:
            p = self.st.get((cls, r))
            if p is not None:
                d = self.pos - p - 1
                n = max(n, ws - d)
        return n

    def I(self, text):
        t = text.split(";")[0].strip()
        parts = t.split(None, 1)
        op = parts[0]
        rest = parts[1] if len(parts) > 1 else ""
        ops = []
        depth = 0; cur = ""
        for ch in rest:
            if ch == "[": depth += 1
            if ch == "]": depth -= 1
            if ch == "," and depth == 0:
                ops.append(cur); cur = ""
            else:
                cur += ch
        if cur.strip():
            ops.append(cur)
        ops = [o.strip().split()[0] if o.strip() else "" for o in ops]
        R = [regs_of(o) for o in ops]
        need = 0
        wr = []
        is_valu = op.startswith("v_") and not op.startswith("v_mfma")
        is_mfma = op.startswith("v_mfma")
        is_vmem = op.startswith(("buffer_", "global_")) and op not in ("buffer_inv", "buffer_wbl2")
        is_ds = op.startswith("ds_")
        if is_mfma:
            D, A_, B_, C_ = R[0], R[1], R[2], R[3] if len(R) > 3 else []
            need = max(need, self._need("valu", A_ + B_ + C_, 2))
            need = max(need, self._need("dot", A_ + B_ + C_ + D, 3))
            need = max(need, self._need("mfma", A_ + B_, 8))
            if C_ != D or True:
                for r in C_:
                    p = self.st.get(("mfma", r))
                    if p is not None and self.st.get(("mfmaD", r)) != tuple(C_):
                        need = max(need, 6 - (self.pos - p - 1))
            if C_ != D:
                need = max(need, self._need("mfma", D, 8))
            need = max(need, self._need("valu_exec", [("s", "exec")], 4))
            wr.append(("mfma", D)); wr.append(("mfmaC", C_))
        elif is_valu:
            swap = op.startswith("v_permlane")
            if op.startswith("v_cmp"):
                dst = R[0]; src = sum(R[1:], [])
            elif op.startswith(("v_readfirstlane", "v_readlane")):
                dst = R[0]; src = sum(R[1:], [])
                need = max(need, self._need("valu", [r for r in src if r[0] == "v"], 1))
            elif swap:
                dst = R[0] + R[1]; src = R[0] + R[1]
                need = max(need, self._need("valu", src, 2))
            elif op.startswith(("v_add_co", "v_sub_co", "v_addc_co")):
                dst = R[0] + R[1]; src = sum(R[2:], [])
            else:
                dst = R[0]; src = sum(R[1:], [])
                if op.startswith(("v_fmac", "v_dot2c", "v_writelane")):
                    src = src + dst
                if op.startswith("v_cndmask") and len(ops) == 3:
                    src = src + regs_of("vcc")
            vs = [r for r in src if r[0] == "v"]; ss = [r for r in src if r[0] == "s"]
            vd = [r for r in dst if r[0] == "v"]; sd = [r for r in dst if r[0] == "s"]
            if "_dpp" in op or "row_" in text or "quad_perm" in text:
                need = max(need, self._need("valu", vs, 2))
                need = max(need, self._need("valu_exec", [("s", "exec")], 5))
            need = max(need, self._need("mfma", vs + vd, 8))
            need = max(need, self._need("mfmaC", vd, 3))
            isdot = op.startswith("v_dot2")
            if isdot:
                need = max(need, self._need("dot", R[1] + R[2], 3))
            else:
                need = max(need, self._need("dot", vs + vd, 3))
            if op.split("_e")[0] not in TRANS and op not in TRANS:
                need = max(need, self._need("trans", vs, 1))
            need = max(need, self._need("valu_s", ss, 2))
            need = max(need, self._need("store", vd, 2))
            wr.append(("valu", vd))
            if isdot: wr.append(("dot", vd))
            if op in TRANS: wr.append(("trans", vd))
            if sd: wr.append(("valu_s", sd))
            if op.startswith("v_cmpx"): wr.append(("valu_exec", [("s", "exec")]))
        elif is_vmem or is_ds:
            allr = sum(R, [])
            vs = [r for r in allr if r[0] == "v"]; ss = [r for r in allr if r[0] == "s"]
            need = max(need, self._need("mfma", vs, 8))
            need = max(need, self._need("dot", vs, 3))
            need = max(need, self._need("trans", vs, 1))
            if is_vmem:
                need = max(need, self._need("valu_s", ss, 5))
                if "store" in op and ("x4" in op or "x3" in op):
                    d = R[0] if op.startswith("buffer_") else R[1]
                    wr.append(("store", d))
                if "load" in op and R and " lds" not in text:
                    need = max(need, self._need("store", R[0], 1))
                if " lds" in text:
                    need = max(need, self._need("m0", [("s", "m0")], 1))
            else:
                if op.startswith("ds_read"):
                    need = max(need, self._need("store", R[0], 1))
        else:
            allr = sum(R[1:] if not op.startswith(("s_cmp", "s_bitcmp")) else R, [])
            if op.startswith("s_cbranch_vcc"):
                allr = regs_of("vcc")
            need = max(need, self._need("valu_s", [r for r in allr if r[0] == "s"], 1))
            if ops and ops[0] == "m0":
                wr.append(("m0", [("s", "m0")]))
        while need > 0:
            k = min(need, 16)
            self.lines.append(f"  s_nop {k-1}")
            self.pos += k; need -= k; self.nnop += 1
        self.lines.append("  " + text)
        for cls, regs in wr:
            for r in regs:
                self.st[(cls, r)] = self.pos
                if cls == "mfma":
                    self.st[("mfmaD", r)] = tuple(regs)
        if op == "s_nop":
            self.pos += int(ops[0]) + 1
        else:
            self.pos += 1
        if op.startswith(("s_cbranch", "s_branch")):
            tgt = ops[0]
            snap = {k: self.pos - p for k, p in self.st.items() if k[0] != "mfmaD" and self.pos - p < 24}
            self.snaps.setdefault(tgt, []).append(snap)

    def text(self):
        return "\n".join(self.lines) + "\n"
```

```python
import sys, json, math, struct
from asmlib import Asm
NAME = "gated_mix__sliding_block_cached__mixer_channel_mlp__decode"

def f2u(x):
    return struct.unpack("<I", struct.pack("<f", x))[0]

WS_Q = 0x0
WS_H = 0x10000
WS_G = 0x24000
WS_O = 0x40000
WS_P = 0x100000
WS_TS = 0x800000
WS_SIZE = 0x1000000

L_Q = 0
L_MAX = 2048
L_L = 2048 + 64
L_STG = 2304
L_O = 4096
L_ACC = 12288
L_S1 = 4096
LDS_SIZE = 4096 + 36864

def gen(D=6, POLL_AT=20, ts=False, spin=400000):
    a = Asm(); I = a.I
    hdr = open("cdna_kernels/" + NAME + ".s.ref").read().split("\n")
    hdr = [l for l in hdr if l.startswith(";") and "@launch" not in l]
    for l in hdr: a.raw(l)
    a.raw(f"; @launch grid=(256,1,1) block=(512,1,1) lds={LDS_SIZE}")
    a.raw('.amdgcn_target "amdgcn-amd-amdhsa--gfx950"')
    a.raw(".text"); a.raw(f".globl {NAME}_kernel"); a.raw(".p2align 8"); a.raw(f".type {NAME}_kernel,@function")
    a.raw(f"{NAME}_kernel:")
    pX, pK, pV, pWQ, pWO, pW1, pB1, pW2, pB2, pGT, pOUT, pDBG, pWS = 8, 10, 12, 14, 16, 20, 22, 24, 26, 28, 30, 32, 34
    sK, sV, sWS, sX, sW, sT = 36, 40, 44, 48, 52, 56
    sU = 60
    sWAVE, sWG = 3, 2
    sSEL0, sSEL1 = 68, 69
    sA, sB, sC, sD_, sE = 70, 71, 72, 73, 74
    sSTR = 75; sCG = 76; sSIG = 77; sROLE = 78
    sSPIN = 79
    sM0, sM1 = 80, 82
    sTS = 84
    srd = lambda s: f"s[{s}:{s+3}]"
    vL, vK, vV, vROW, vB8, vT0, vT1, vT2, vT3, vW, vG, vM, vO, vS = 0, 1, 2, 3, 4, 5, 6, 7, 8, 9, 10, 11, 12, 13
    vT4, vT5 = 14, 15
    QF = 16; TMP = 24; VB0 = 32; WR = 64; HI = 128
    VB1 = 224; PR = 192; ONES = 208; ACCL = 212; ACC = 128; ACC2 = 160
    v4 = lambda r: f"v[{r}:{r+3}]"
    stamp_n = [0]
    def stamp(i):
        if ts:
            I(f"s_memrealtime s[{sTS+2*i}:{sTS+2*i+1}]")
    def mk_srd(s, p, nrec, addlo=None):
        if addlo is None:
            I(f"s_mov_b32 s{s}, s{p}"); I(f"s_mov_b32 s{s+1}, s{p+1}")
        else:
            I(f"s_add_u32 s{s}, s{p}, {addlo}"); I(f"s_addc_u32 s{s+1}, s{p+1}, 0")
        I(f"s_mov_b32 s{s+2}, {nrec}") if not str(nrec).startswith("#") else I(f"s_sub_u32 s{s+2}, {nrec[1:]}, {addlo}")
        I(f"s_mov_b32 s{s+3}, 0x20000")

    def gemv_item(wr, act, acc, first, worder=True):
        for j in range(8):
            t = TMP + 4 * (j & 1)
            for m in range(4):
                I(f"v_perm_b32 v{t+m}, v{wr + 4*(2*m+1) + (j>>1)}, v{wr + 4*(2*m) + (j>>1)}, s{sSEL0 + (j&1)}")
            c = "0" if first else v4(acc + 4*j)
            if worder:
                I(f"v_mfma_f32_16x16x32_bf16 {v4(acc+4*j)}, {v4(t)}, {v4(act)}, {c}")
            else:
                I(f"v_mfma_f32_16x16x32_bf16 {v4(acc+4*j)}, {v4(act)}, {v4(t)}, {c}")

    def allred(x, t, op, bit3=False):
        if bit3:
            I(f"{op}_dpp v{x}, v{x}, v{x} row_ror:8 row_mask:0xf bank_mask:0xf")
        I(f"v_mov_b32 v{t}, v{x}"); I(f"v_permlane16_swap_b32 v{x}, v{t}"); I(f"{op} v{x}, v{x}, v{t}")
        I(f"v_mov_b32 v{t}, v{x}"); I(f"v_permlane32_swap_b32 v{x}, v{t}"); I(f"{op} v{x}, v{x}, v{t}")

    stamp(0)
    I("s_cmp_ge_u32 s2, 256"); I("s_cbranch_scc1 L_end")
    I("s_load_dwordx16 s[8:23], s[0:1], 0")
    I("s_load_dwordx8 s[24:31], s[0:1], 64")
    I("s_load_dwordx4 s[32:35], s[0:1], 96")
    I(f"v_lshrrev_b32 v{vT0}, 6, v0")
    I(f"v_and_b32 v{vL}, 63, v0")
    I(f"v_readfirstlane_b32 s{sWAVE}, v{vT0}")
    I(f"v_lshlrev_b32 v{vV}, 4, v{vL}")
    I(f"s_cmp_lg_u32 s{sWAVE}, 1"); I("s_cbranch_scc1 L_nopf")
    I(f"s_getpc_b64 s[{sA}:{sB}]")
    a.label("L_pc")
    I(f"v_lshlrev_b32 v{vT0}, 7, v{vL}")
    I(f"v_add_u32 v{vT1}, 0x2000, v{vT0}")
    I(f"v_min_u32 v{vT0}, L_end-L_pc, v{vT0}")
    I(f"v_min_u32 v{vT1}, L_end-L_pc, v{vT1}")
    I(f"global_load_dword v{TMP}, v{vT0}, s[{sA}:{sB}]")
    I(f"global_load_dword v{TMP+1}, v{vT1}, s[{sA}:{sB}]")
    a.label("L_nopf")
    I(f"v_and_b32 v{vK}, 48, v{vL}")
    I(f"v_bfe_u32 v{vT0}, v{vL}, 1, 1"); I(f"v_lshl_or_b32 v{vK}, v{vT0}, 10, v{vK}")
    I(f"v_bfe_u32 v{vT0}, v{vL}, 2, 2"); I(f"v_lshl_or_b32 v{vK}, v{vT0}, 8, v{vK}")
    I(f"v_and_b32 v{vT0}, 1, v{vL}"); I(f"v_lshl_or_b32 v{vK}, v{vT0}, 6, v{vK}")
    I(f"v_lshrrev_b32 v{vT0}, 4, v{vL}"); I(f"v_lshlrev_b32 v{vROW}, 3, v{vT0}")
    I(f"v_bfe_u32 v{vT0}, v{vL}, 3, 1"); I(f"v_lshl_or_b32 v{vROW}, v{vT0}, 5, v{vROW}")
    I(f"v_and_b32 v{vB8}, 7, v{vL}")
    for u in range(8):
        I(f"s_mov_b32 s{sU+u}, {u*32768}")
    I(f"s_mov_b32 s{sSEL0}, 0x05040100"); I(f"s_mov_b32 s{sSEL1}, 0x07060302")
    I(f"s_lshr_b32 s{sA}, s2, 1"); I(f"s_lshl_b32 s{sA}, s{sA}, 21")
    I(f"s_and_b32 s{sB}, s2, 1"); I(f"s_lshl_b32 s{sB}, s{sB}, 18"); I(f"s_add_u32 s{sA}, s{sA}, s{sB}")
    I(f"s_lshl_b32 s{sB}, s{sWAVE}, 12"); I(f"s_add_u32 s{sA}, s{sA}, s{sB}"); I(f"s_add_u32 s{sA}, s{sA}, 0x180000")
    I(f"s_lshl_b32 s{sB}, s{sWAVE}, 8"); I(f"s_add_u32 s{sB}, s{sB}, s2")
    I(f"s_cmp_lt_u32 s{sB}, 72"); I(f"s_cselect_b32 s{sROLE}, 3, 0")
    if ts:
        I(f"s_mov_b64 s[{sTS+12}:{sTS+13}], 0")
    I("s_waitcnt lgkmcnt(0)")
    mk_srd(sK, pK, "#0x10000000", f"s{sA}")
    mk_srd(sV, pV, "#0x10000000", f"s{sA}")
    mk_srd(sWS, pWS, WS_SIZE)
    mk_srd(4, pDBG, 256)
    I("s_cmp_ge_u32 s2, 136"); I("s_cbranch_scc1 L_s2loads")
    XO = HI + 40; GA = HI + 48; XS = HI + 56
    I("s_setprio 2")
    mk_srd(sX, pX, 8 * 1152)
    I(f"v_mul_u32_u24 v{vT0}, 1152, v{vB8}"); I(f"v_lshl_add_u32 v{vT0}, v{vROW}, 1, v{vT0}")
    I(f"s_lshl_b32 s{sC}, s{sWAVE}, 7")
    I(f"buffer_load_dwordx4 {v4(XO)}, v{vT0}, {srd(sX)}, s{sC} offen")
    I(f"s_cmp_lg_u32 s{sWAVE}, 7"); I("s_cbranch_scc1 L_s1x")
    I(f"buffer_load_dwordx4 {v4(XO+4)}, v{vT0}, {srd(sX)}, 0 offen offset:1024")
    a.label("L_s1x")
    I("s_cmp_lt_u32 s2, 64"); I("s_cbranch_scc1 L_s1q")
    mk_srd(sT, pGT, 1152)
    I(f"v_lshlrev_b32 v{vT1}, 1, v{vROW}")
    I(f"buffer_load_dwordx4 {v4(GA)}, v{vT1}, {srd(sT)}, s{sC} offen")
    I(f"buffer_load_dwordx4 {v4(GA+4)}, v{vT1}, {srd(sT)}, 0 offen offset:1024")
    I(f"s_sub_u32 s{sCG}, s2, 64"); I(f"s_mov_b32 s{sSTR}, 9216")
    I(f"s_lshl_b32 s{sA}, s{sCG}, 7")
    mk_srd(sT, pB1, 4608 * 2)
    I(f"v_lshlrev_b32 v{vT1}, 1, v{vL}")
    I(f"buffer_load_ushort v{vG}, v{vT1}, {srd(sT)}, s{sA} offen")
    mk_srd(sW, pW1, f"#{576*9216}", f"s{sA}")
    I("s_branch L_s1w")
    a.label("L_s1q")
    I(f"s_mov_b32 s{sCG}, s2"); I(f"s_mov_b32 s{sSTR}, 8192")
    I(f"s_lshl_b32 s{sA}, s{sCG}, 7")
    mk_srd(sW, pWQ, f"#{576*8192}", f"s{sA}")
    a.label("L_s1w")
    I(f"v_lshlrev_b32 v{vT1}, 4, v{vB8}")
    I(f"v_mad_u32_u24 v{vW}, v{vROW}, s{sSTR}, v{vT1}")
    I(f"s_lshl_b32 s{sA}, s{sWAVE}, 6"); I(f"s_mul_i32 s{sA}, s{sA}, s{sSTR}")
    for e in range(8):
        I(f"buffer_load_dwordx4 {v4(WR+4*e)}, v{vW}, {srd(sW)}, s{sA} offen nt")
        if e < 7: I(f"s_add_u32 s{sA}, s{sA}, s{sSTR}")
    I(f"s_cmp_lg_u32 s{sWAVE}, 7"); I("s_cbranch_scc1 L_s1c")
    I(f"s_lshl_b32 s{sA}, s{sSTR}, 9")
    for e in range(8):
        I(f"buffer_load_dwordx4 {v4(WR+32+4*e)}, v{vW}, {srd(sW)}, s{sA} offen nt")
        if e < 7: I(f"s_add_u32 s{sA}, s{sA}, s{sSTR}")
    I("s_branch L_reset")
    a.label("L_s2loads")
    I(f"s_cmp_ge_u32 s{sWAVE}, 6"); I("s_cbranch_scc1 L_chk7")
    I(f"s_cmp_ge_u32 s{sWAVE}, 3"); I(f"s_cselect_b32 s{sB}, 3, 0"); I(f"s_cselect_b32 s{sC}, 2, 1")
    I(f"s_sub_u32 s{sB}, s{sWAVE}, s{sB}")
    I(f"s_mul_i32 s{sA}, s{sB}, 120"); I(f"s_add_u32 s{sA}, s{sA}, s2"); I(f"s_sub_u32 s{sA}, s{sA}, 136")
    I(f"s_cmp_ge_u32 s{sA}, 324"); I("s_cbranch_scc1 L_kstart")
    I(f"s_mov_b32 s{sROLE}, s{sC}")
    I(f"s_mul_i32 s{sSIG}, s{sA}, 7282"); I(f"s_lshr_b32 s{sSIG}, s{sSIG}, 16")
    I(f"s_mul_i32 s{sCG}, s{sSIG}, 9"); I(f"s_sub_u32 s{sCG}, s{sA}, s{sCG}")
    I(f"s_lshl_b32 s{sSTR}, s{sB}, 13"); I(f"s_add_u32 s{sSTR}, s{sSTR}, {L_ACC}")
    I(f"s_mul_i32 s{sA}, s{sSIG}, {128*1152}"); I(f"s_lshl_b32 s{sB}, s{sCG}, 7"); I(f"s_add_u32 s{sA}, s{sA}, s{sB}")
    I(f"s_cmp_eq_u32 s{sROLE}, 2"); I("s_cbranch_scc1 L_s2w2")
    I(f"s_cmp_ge_u32 s{sSIG}, 32"); I("s_cbranch_scc1 L_kstart")
    mk_srd(sW, pWO, f"#{4096*1152}", f"s{sA}")
    I("s_branch L_s2go")
    a.label("L_s2w2")
    mk_srd(sW, pW2, f"#{4608*1152}", f"s{sA}")
    a.label("L_s2go")
    I(f"v_lshlrev_b32 v{vT1}, 4, v{vB8}")
    I(f"v_mul_u32_u24 v{vW}, 1152, v{vROW}"); I(f"v_add_u32 v{vW}, v{vW}, v{vT1}")
    I(f"s_movk_i32 s{sA}, 4608"); I(f"s_mov_b32 s{sB}, 73728"); I(f"s_mov_b32 s{sC}, 78336")
    for i in range(2):
        for e in range(8):
            so = ["0", f"s{sA}", f"s{sB}", f"s{sC}"][2*i + (e >> 2)]
            I(f"buffer_load_dwordx4 {v4(WR+32*i+4*e)}, v{vW}, {srd(sW)}, {so} offen offset:{(e&3)*1152} nt")
    I("s_branch L_kstart")
    a.label("L_chk7")
    I(f"s_cmp_lg_u32 s{sWAVE}, 7"); I("s_cbranch_scc1 L_kstart")
    I("s_setprio 2")
    a.label("L_reset")
    for i in range(4): I(f"v_mov_b32 v{TMP+4+i}, -1")
    I(f"s_lshl_b32 s{sA}, s2, 11"); I(f"s_add_u32 s{sA}, s{sA}, {WS_O}")
    I(f"buffer_store_dwordx4 {v4(TMP+4)}, v{vV}, {srd(sWS)}, s{sA} offen sc1")
    I(f"s_mul_i32 s{sB}, s2, 6144"); I(f"s_add_u32 s{sB}, s{sB}, {WS_P}")
    for i in range(4):
        I(f"buffer_store_dwordx4 {v4(TMP+4)}, v{vV}, {srd(sWS)}, s{sB} offen offset:{i*1024} sc1")
    I(f"s_add_u32 s{sB}, s{sB}, 4096")
    for i in range(2):
        I(f"buffer_store_dwordx4 {v4(TMP+4)}, v{vV}, {srd(sWS)}, s{sB} offen offset:{i*1024} sc1")
    I("s_mov_b64 exec, 1")
    I(f"buffer_store_dwordx4 {v4(TMP+4)}, v{vV}, {srd(sWS)}, s{sA} offen offset:1024 sc1")
    I("s_mov_b64 exec, -1")
    def kv_load(n):
        if n < 32:
            I(f"buffer_load_dwordx4 {v4(HI+4*n)}, v{vK}, {srd(sK)}, s{sU+(n>>2)} offen offset:{((n>>1)&1)*2048+(n&1)*128} nt")
        else:
            B = (n - 32) >> 3
            v_load(B, n & 7, VB1 if B & 1 else VB0)
    def v_load(B, e, base):
        I(f"buffer_load_dwordx4 {v4(base+4*e)}, v{vV}, {srd(sV)}, s{sU+2*B+(e>>2)} offen offset:{(e&3)*1024} nt")
    assert D <= 8
    I("s_cmp_ge_u32 s2, 136"); I("s_cbranch_scc1 L_kstart")
    a.label("L_s1c")
    stamp(1)
    I("s_cmp_lt_u32 s2, 64"); I("s_cbranch_scc1 L_s1mm")
    I(f"s_mov_b32 s{sA}, 0x3f803f80")
    I(f"s_cmp_lg_u32 s{sWAVE}, 7"); I("s_cbranch_scc1 L_ln1")
    I(f"s_waitcnt vmcnt(24)")
    for k in range(4):
        x = XO + 4 + k
        c = lambda r: "0" if k == 0 else f"v{r}"
        I(f"v_dot2_f32_bf16 v{TMP}, v{x}, s{sA}, {c(TMP)}"); I(f"v_dot2_f32_bf16 v{TMP+1}, v{x}, v{x}, {c(TMP+1)}")
        I(f"v_dot2_f32_bf16 v{TMP+2}, v{x}, v{GA+4+k}, {c(TMP+2)}")
    I("s_branch L_ln2")
    a.label("L_ln1")
    I(f"s_waitcnt vmcnt(8)")
    for k in range(3): I(f"v_mov_b32 v{TMP+k}, 0")
    a.label("L_ln2")
    for k in range(4):
        x = XO + k
        I(f"v_dot2_f32_bf16 v{TMP}, v{x}, s{sA}, v{TMP}"); I(f"v_dot2_f32_bf16 v{TMP+1}, v{x}, v{x}, v{TMP+1}")
        I(f"v_dot2_f32_bf16 v{TMP+2}, v{x}, v{GA+k}, v{TMP+2}")
    for k in range(3): allred(TMP + k, vT1 + k, "v_add_f32", True)
    I(f"v_lshlrev_b32 v{vT0}, 7, v{vB8}")
    I(f"s_lshl_b32 s{sA}, s{sWAVE}, 4"); I(f"v_add_u32 v{vT1}, s{sA}, v{vT0}")
    I("s_mov_b64 exec, 0xff")
    I(f"ds_write_b128 v{vT1}, {v4(TMP)} offset:{L_Q}")
    I("s_mov_b64 exec, -1")
    I("s_waitcnt lgkmcnt(0)"); I("s_barrier")
    for w in range(8): I(f"ds_read_b128 {v4(XS+4*w)}, v{vT0} offset:{L_Q + 16*w}")
    I("s_waitcnt lgkmcnt(0)")
    for st in (16, 8, 4):
        for k in range(0, st, 2):
            I(f"v_pk_add_f32 v[{XS+k}:{XS+k+1}], v[{XS+k}:{XS+k+1}], v[{XS+k+st}:{XS+k+st+1}]")
    I(f"v_mul_f32 v{vT0}, {hex(f2u(1/576))}, v{XS}")
    I(f"v_mul_f32 v{vT2}, {hex(f2u(1/576))}, v{XS+1}")
    I(f"v_fma_f32 v{vT2}, -v{vT0}, v{vT0}, v{vT2}")
    I(f"v_max_f32 v{vT2}, 0, v{vT2}")
    I(f"v_add_f32 v{vT2}, {hex(f2u(1e-5))}, v{vT2}")
    I(f"v_rsq_f32 v{vT2}, v{vT2}")
    for k in range(8):
        x = XO + k
        I(f"v_lshlrev_b32 v{vT1}, 16, v{x}"); I(f"v_and_b32 v{vT3}, 0xffff0000, v{x}")
        I(f"v_sub_f32 v{vT1}, v{vT1}, v{vT0}"); I(f"v_sub_f32 v{vT3}, v{vT3}, v{vT0}")
        I(f"v_mul_f32 v{vT1}, v{vT1}, v{vT2}"); I(f"v_mul_f32 v{vT3}, v{vT3}, v{vT2}")
        I(f"v_cvt_pk_bf16_f32 v{x}, v{vT1}, v{vT3}")
    I(f"s_lshl_b32 s{sA}, s{sWAVE}, 8"); I(f"s_add_u32 s{sA}, s{sA}, s2")
    I(f"s_cmp_lg_u32 s{sA}, {7*256+64}"); I("s_cbranch_scc1 L_s1mm")
    I(f"v_mul_f32 v{vT0}, {hex(f2u(-math.log2(math.e)))}, v{XS+2}")
    I(f"v_exp_f32 v{vT0}, v{vT0}"); I(f"v_add_f32 v{vT0}, 1.0, v{vT0}"); I(f"v_rcp_f32 v{vT0}, v{vT0}")
    I(f"v_lshlrev_b32 v{vT1}, 2, v{vB8}")
    I(f"s_mov_b32 s{sA}, {WS_G}")
    I("s_mov_b64 exec, 0xff")
    I(f"buffer_store_dword v{vT0}, v{vT1}, {srd(sWS)}, s{sA} offen sc1")
    I("s_mov_b64 exec, -1")
    a.label("L_s1mm")
    S1ACC = VB0
    I(f"s_waitcnt vmcnt(0)")
    I("s_setprio 0")
    for n in range(D): kv_load(n)
    I("s_setprio 2")
    gemv_item(WR, XO, S1ACC, True)
    I(f"s_cmp_lg_u32 s{sWAVE}, 7"); I("s_cbranch_scc1 L_s1wr")
    gemv_item(WR + 32, XO + 4, S1ACC, False)
    a.label("L_s1wr")
    I(f"v_lshrrev_b32 v{vT0}, 4, v{vL}"); I(f"v_mul_u32_u24 v{vT0}, 1152, v{vT0}")
    I(f"v_mul_u32_u24 v{vT1}, 144, v{vB8}"); I(f"s_mul_i32 s{sA}, s{sWAVE}, 4608")
    I(f"v_add3_u32 v{vT0}, v{vT0}, v{vT1}, s{sA}")
    I(f"s_mov_b32 exec_lo, 0x00ff00ff"); I(f"s_mov_b32 exec_hi, 0xff00ff00")
    for j in range(8):
        I(f"ds_write_b128 v{vT0}, {v4(S1ACC+4*j)} offset:{L_S1 + j*16}")
    I("s_mov_b64 exec, -1")
    I(f"v_lshrrev_b32 v{vT0}, 5, v{vL}"); I(f"v_mul_u32_u24 v{vT0}, 1152, v{vT0}")
    I(f"v_lshl_add_u32 v{vT0}, v{vB8}, 4, v{vT0}")
    I(f"v_bfe_u32 v{vT1}, v{vL}, 3, 2"); I(f"v_lshl_add_u32 v{vT0}, v{vT1}, 2, v{vT0}")
    I(f"s_mul_i32 s{sA}, s{sWAVE}, 144"); I(f"v_add_u32 v{vT0}, s{sA}, v{vT0}")
    I("s_waitcnt lgkmcnt(0)"); I("s_barrier")
    for n in range(16):
        I(f"ds_read_b32 v{S1ACC+n}, v{vT0} offset:{L_S1 + n*2304}")
    I("s_waitcnt lgkmcnt(0)")
    for st in (8, 4, 2, 1):
        for n in range(st):
            I(f"v_add_f32 v{S1ACC+n}, v{S1ACC+n}, v{S1ACC+n+st}")
    I("s_cmp_lt_u32 s2, 64"); I("s_cbranch_scc1 L_s1st")
    u = S1ACC
    I(f"v_lshlrev_b32 v{vG}, 16, v{vG}"); I(f"v_add_f32 v{u}, v{u}, v{vG}")
    I(f"v_mul_f32 v{vT1}, v{u}, v{u}")
    k1 = -2 * math.sqrt(2 / math.pi) * math.log2(math.e)
    I(f"v_mov_b32 v{vT2}, {hex(f2u(k1))}")
    I(f"v_fmac_f32 v{vT2}, {hex(f2u(k1*0.044715))}, v{vT1}")
    I(f"v_mul_f32 v{vT2}, v{vT2}, v{u}")
    I(f"v_exp_f32 v{vT2}, v{vT2}"); I(f"v_add_f32 v{vT2}, 1.0, v{vT2}"); I(f"v_rcp_f32 v{vT2}, v{vT2}")
    I(f"v_mul_f32 v{u}, v{u}, v{vT2}")
    a.label("L_s1st")
    I(f"v_cvt_pk_bf16_f32 v{u}, v{u}, v{u}")
    I(f"s_lshl_b32 s{sA}, s{sWAVE}, 7"); I(f"v_lshl_add_u32 v{vT0}, v{vL}, 1, s{sA}")
    I(f"ds_write_b16 v{vT0}, v{u} offset:{L_STG}")
    I("s_waitcnt lgkmcnt(0)"); I("s_barrier")
    I(f"s_cmp_lg_u32 s{sWAVE}, 7"); I("s_cbranch_scc1 L_arrived")
    I(f"ds_read_b128 {v4(S1ACC)}, v{vV} offset:{L_STG}")
    I(f"v_lshrrev_b32 v{vT0}, 3, v{vL}"); I(f"v_lshlrev_b32 v{vT1}, 4, v{vB8}")
    I(f"v_mad_u32_u24 v{vT0}, v{vT0}, s{sSTR}, v{vT1}")
    I(f"s_lshl_b32 s{sA}, s{sCG}, 7")
    I(f"s_cmp_lt_u32 s2, 64"); I(f"s_cselect_b32 s{sB}, {WS_Q}, {WS_H}"); I(f"s_add_u32 s{sA}, s{sA}, s{sB}")
    I("s_waitcnt lgkmcnt(0)")
    I(f"buffer_store_dwordx4 {v4(S1ACC)}, v{vT0}, {srd(sWS)}, s{sA} offen sc1")
    I("s_waitcnt vmcnt(0)")
    I("s_branch L_arrive")
    a.label("L_kstart")
    for n in range(D): kv_load(n)
    stamp(1)
    I(f"s_cmp_lg_u32 s{sWAVE}, 7"); I("s_cbranch_scc1 L_arrived")
    I(f"s_waitcnt vmcnt({D})")
    a.label("L_arrive")
    I(f"v_mov_b32 v{vT0}, 1")
    I("s_mov_b64 exec, 1")
    I(f"buffer_atomic_add v{vT0}, off, {srd(4)}, 0 sc1")
    I("s_mov_b64 exec, -1")
    a.label("L_arrived")
    I("s_setprio 0")
    I(f"v_mov_b32 v{vO}, 0"); I(f"v_mov_b32 v{vS}, 0")
    stamp(2)
    DT = lambda T: (TMP if T == 0 else HI + 4 * (T - 1))
    cs = (128 ** -0.5) * math.log2(math.e)
    pre = {}; post = {}
    def at(d, n, fn): d.setdefault(n, []).append(fn)

    def poll_issue():
        I(f"s_cmp_lg_u32 s{sWAVE}, 0"); I("s_cbranch_scc1 L_p1")
        I(f"buffer_load_dword v{vT2}, off, {srd(4)}, 0 sc1")
        a.label("L_p1")
    def poll_check():
        I(f"s_cmp_lg_u32 s{sWAVE}, 0"); I("s_cbranch_scc1 L_p2")
        I(f"s_mov_b32 s{sSPIN}, {spin}")
        a.label("L_poll0")
        I(f"v_readfirstlane_b32 s{sA}, v{vT2}")
        I(f"s_cmp_ge_u32 s{sA}, 256"); I("s_cbranch_scc1 L_poll0ok")
        I(f"s_sub_u32 s{sSPIN}, s{sSPIN}, 1"); I("s_cbranch_scc1 L_poll0ok")
        I("s_sleep 4")
        I(f"buffer_load_dword v{vT2}, off, {srd(4)}, 0 sc1")
        I("s_waitcnt vmcnt(0)")
        I("s_branch L_poll0")
        a.label("L_poll0ok")
        I(f"v_and_b32 v{vT0}, 48, v{vL}")
        I(f"v_and_b32 v{vT1}, 1, v{vL}"); I(f"v_lshl_or_b32 v{vT0}, v{vT1}, 8, v{vT0}")
        I(f"v_bfe_u32 v{vT1}, v{vL}, 1, 1"); I(f"v_lshl_or_b32 v{vT0}, v{vT1}, 6, v{vT0}")
        I(f"s_lshr_b32 s{sA}, s2, 1"); I(f"s_lshl_b32 s{sA}, s{sA}, 9")
        I(f"buffer_load_dwordx4 {v4(QF)}, v{vT0}, {srd(sWS)}, s{sA} offen offset:{WS_Q} sc1")
        I(f"buffer_load_dwordx4 {v4(QF+4)}, v{vT0}, {srd(sWS)}, s{sA} offen offset:{WS_Q+128} sc1")
        a.label("L_p2")
    def q_share():
        I(f"s_cmp_lg_u32 s{sWAVE}, 0"); I("s_cbranch_scc1 L_p3")
        I(f"ds_write_b128 v{vV}, {v4(QF)} offset:{L_Q}")
        I(f"ds_write_b128 v{vV}, {v4(QF+4)} offset:{L_Q+1024}")
        a.label("L_p3")
        I("s_waitcnt lgkmcnt(0)"); I("s_barrier")
        stamp(3)
        I(f"ds_read_b128 {v4(QF)}, v{vV} offset:{L_Q}")
        I(f"ds_read_b128 {v4(QF+4)}, v{vV} offset:{L_Q+1024}")
        I(f"s_cmp_eq_u32 s{sROLE}, 0"); I("s_cbranch_scc1 L_nog")
        I(f"v_lshlrev_b32 v{vT1}, 2, v{vB8}")
        I(f"s_mov_b32 s{sA}, {WS_G}")
        I(f"buffer_load_dword v{vG}, v{vT1}, {srd(sWS)}, s{sA} offen sc1")
        a.label("L_nog")
        I("s_waitcnt lgkmcnt(0)")
    def qk(T0, T1):
        def f():
            for T in range(T0, T1):
                I(f"v_mfma_f32_16x16x32_bf16 {v4(DT(T))}, {v4(HI+8*T)}, {v4(QF)}, 0")
                I(f"v_mfma_f32_16x16x32_bf16 {v4(DT(T))}, {v4(HI+8*T+4)}, {v4(QF+4)}, {v4(DT(T))}")
        return f
    def sadd(T0, T1):
        def f():
            for T in range(T0, T1):
                d = DT(T)
                I(f"v_add_f32_dpp v{d}, v{d+1}, v{d} quad_perm:[2,3,0,1] row_mask:0xf bank_mask:0xf")
                I(f"v_add_f32_dpp v{d+2}, v{d+3}, v{d+2} quad_perm:[2,3,0,1] row_mask:0xf bank_mask:0xf")
            for T in range(T0, T1):
                d = DT(T)
                if T == 0: I(f"v_max_f32 v{vM}, v{d}, v{d+2}")
                else: I(f"v_max3_f32 v{vM}, v{d}, v{d+2}, v{vM}")
        return f
    def hload():
        I(f"s_cmp_lg_u32 s{sROLE}, 2"); I("s_cbranch_scc1 L_noh")
        I(f"v_mul_u32_u24 v{vT0}, 9216, v{vB8}"); I(f"v_lshl_add_u32 v{vT0}, v{vROW}, 1, v{vT0}")
        I(f"s_lshl_b32 s{sA}, s{sSIG}, 8"); I(f"s_add_u32 s{sA}, s{sA}, {WS_H}")
        I(f"buffer_load_dwordx4 {v4(QF)}, v{vT0}, {srd(sWS)}, s{sA} offen sc1")
        I(f"buffer_load_dwordx4 {v4(QF+4)}, v{vT0}, {srd(sWS)}, s{sA} offen offset:128 sc1")
        a.label("L_noh")
    def maxshare():
        allred(vM, vT0, "v_max_f32")
        I(f"v_and_b32 v{vT1}, 1, v{vL}"); I(f"v_lshlrev_b32 v{vT1}, 5, v{vT1}")
        I(f"s_lshl_b32 s{sA}, s{sWAVE}, 2"); I(f"v_add_u32 v{vT2}, s{sA}, v{vT1}")
        I("s_mov_b64 exec, 3")
        I(f"ds_write_b32 v{vT2}, v{vM} offset:{L_MAX}")
        I("s_mov_b64 exec, -1")
    def maxread():
        I("s_waitcnt lgkmcnt(0)"); I("s_barrier")
        I(f"ds_read_b128 {v4(PR)}, v{vT1} offset:{L_MAX}")
        I(f"ds_read_b128 {v4(PR+4)}, v{vT1} offset:{L_MAX+16}")
        for i in range(4): I(f"v_mov_b32 v{ONES+i}, 0x3f803f80")
        I(f"s_mov_b32 s{sE}, {hex(f2u(cs))}")
        I("s_waitcnt lgkmcnt(0)")
        I(f"v_max3_f32 v{vM}, v{PR}, v{PR+1}, v{PR+2}"); I(f"v_max3_f32 v{vM}, v{PR+3}, v{PR+4}, v{vM}")
        I(f"v_max3_f32 v{vM}, v{PR+5}, v{PR+6}, v{vM}"); I(f"v_max_f32 v{vM}, v{PR+7}, v{vM}")
        I(f"v_mul_f32 v{vM}, s{sE}, v{vM}")
    def exps(B):
        def f():
            for T in range(4*B, 4*B+4):
                d = DT(T)
                I(f"v_fma_f32 v{d}, v{d}, s{sE}, -v{vM}"); I(f"v_fma_f32 v{d+2}, v{d+2}, s{sE}, -v{vM}")
                I(f"v_exp_f32 v{d}, v{d}"); I(f"v_exp_f32 v{d+2}, v{d+2}")
            for T in range(4*B, 4*B+4):
                d = DT(T)
                I(f"v_cvt_pk_bf16_f32 v{PR+T}, v{d}, v{d+2}")
        return f
    def lsum():
        for B in range(4):
            I(f"v_mfma_f32_16x16x32_bf16 {v4(ACCL)}, {v4(PR+4*B)}, {v4(ONES)}, {'0' if B == 0 else v4(ACCL)}")
        stamp(4)
    def lwrite():
        I(f"s_lshl_b32 s{sA}, s{sWAVE}, 2"); I(f"v_mov_b32 v{vT2}, s{sA}")
        I("s_mov_b64 exec, 1")
        I(f"ds_write_b32 v{vT2}, v{ACCL} offset:{L_L}")
        I(f"ds_write_b32 v{vT2}, v{ACCL+1} offset:{L_L+32}")
        I("s_mov_b64 exec, -1")
    def pv(B):
        return lambda: gemv_item(VB1 if B & 1 else VB0, PR + 4 * B, ACC, B == 0, worder=False)
    def mid(part):
        def f():
            I(f"s_cmp_eq_u32 s{sROLE}, 1"); I(f"s_cbranch_scc1 L_mid_wo{part}")
            I(f"s_cmp_lg_u32 s{sROLE}, 2"); I(f"s_cbranch_scc1 L_mid_done{part}")
            if part < 2:
                gemv_item(WR + 32 * part, QF + 4 * part, ACC2, part == 0)
            else:
                I(f"v_sub_f32 v{vT0}, 1.0, v{vG}")
                I(f"v_add_u32 v{vT1}, s{sSTR}, v{vV}")
                for k in range(32): I(f"v_mul_f32 v{ACC2+k}, v{ACC2+k}, v{vT0}")
                for j in range(8): I(f"ds_write_b128 v{vT1}, {v4(ACC2+4*j)} offset:{j*1024}")
            I(f"s_branch L_mid_done{part}")
            a.label(f"L_mid_wo{part}")
            if part < 2:
                src, dst = ((WR, ACC2), (WR + 32, WR))[part]
                for j in range(8):
                    for m in range(4):
                        I(f"v_perm_b32 v{dst+4*j+m}, v{src + 4*(2*m+1) + (j>>1)}, v{src + 4*(2*m) + (j>>1)}, s{sSEL0 + (j&1)}")
            else:
                I(f"s_lshr_b32 s{sA}, s{sSIG}, 1"); I(f"s_lshl_b32 s{sA}, s{sA}, 12"); I(f"s_add_u32 s{sA}, s{sA}, {WS_O}")
                I(f"s_and_b32 s{sB}, s{sSIG}, 1"); I(f"s_lshl_b32 s{sC}, s{sB}, 9"); I(f"s_add_u32 s{sC}, s{sC}, s{sA}")
                I(f"s_lshl_b32 s{sB}, s{sB}, 3"); I(f"s_add_u32 s{sB}, s{sB}, s{sA}")
                I(f"v_lshlrev_b32 v{vT0}, 16, v{vB8}")
                I(f"v_add_u32 v{vS}, s{sB}, v{vT0}")
                I(f"v_lshl_add_u32 v{vO}, v{vROW}, 2, v{vT0}"); I(f"v_add_u32 v{vO}, s{sC}, v{vO}")
            a.label(f"L_mid_done{part}")
        return f
    nX = POLL_AT + 2 * D
    at(pre, POLL_AT, poll_issue); at(pre, POLL_AT + D, poll_check); at(post, nX, q_share)
    Tdone = 0; Sdone = 0; n = nX
    while Sdone < 16:
        avail = min(16, (n - D + 1) // 2)
        T1 = min(avail, Tdone + 4)
        S1 = Tdone
        if T1 > Tdone: at(post, n, qk(Tdone, T1))
        if S1 > Sdone: at(post, n, sadd(Sdone, S1))
        if Tdone < 16 and T1 == 16: nQ = n
        Sdone = S1; Tdone = T1; n += 1
    assert nQ < 40, nQ
    at(post, nQ, hload)
    at(post, n - 1, maxshare); at(post, n, maxread); n += 1
    for B in range(0, 4, 2):
        at(post, n, exps(B)); at(post, n, exps(B + 1)); n += 1
    at(post, n - 1, lsum)
    n = max(n, 39 + D); assert n < 48, n
    at(post, n, pv(0)); at(post, n, lwrite)
    n = max(n + 1, nQ + 1 + D)
    nb1 = 47 + D
    for part in range(3):
        if n == nb1: n += 1
        at(post, n, mid(part)); n += 1
    at(post, nb1, pv(1)); assert nb1 < 56
    at(post, 55 + D, pv(2))
    for n in range(D, 64):
        I(f"s_waitcnt vmcnt({D-1})")
        for f in pre.get(n, []): f()
        kv_load(n)
        for f in post.get(n, []): f()
    I(f"v_and_b32 v{vT0}, 15, v{vL}"); I(f"v_lshlrev_b32 v{vT0}, 5, v{vT0}")
    I(f"s_lshl_b32 s{sA}, s{sWAVE}, 10"); I(f"s_add_u32 s{sA}, s{sA}, {L_O}"); I(f"v_add_u32 v{vT0}, s{sA}, v{vT0}")
    I("s_waitcnt vmcnt(0)")
    stamp(5)
    pv(3)()
    I("s_mov_b64 exec, 0xffff")
    for j in range(8):
        I(f"ds_write2_b32 v{vT0}, v{ACC+4*j}, v{ACC+4*j+1} offset0:{j} offset1:{128+j}")
    I("s_mov_b64 exec, -1")
    I("s_waitcnt lgkmcnt(0)"); I("s_barrier")
    I(f"s_cmp_lt_u32 s{sWAVE}, 6"); I("s_cbranch_scc1 L_tail_roles")
    I(f"s_lshl_b32 s{sA}, s2, 11"); I(f"s_add_u32 s{sA}, s{sA}, {WS_O}")
    I(f"s_cmp_eq_u32 s{sWAVE}, 6"); I("s_cbranch_scc1 L_pub_stats")
    for w in range(8): I(f"ds_read_b128 {v4(VB0+4*w)}, v{vV} offset:{L_O + w*1024}")
    I("s_waitcnt lgkmcnt(0)")
    for st in (16, 8, 4):
        for k in range(0, st, 2):
            I(f"v_pk_add_f32 v[{VB0+k}:{VB0+k+1}], v[{VB0+k}:{VB0+k+1}], v[{VB0+k+st}:{VB0+k+st+1}]")
    I(f"buffer_store_dwordx4 {v4(VB0)}, v{vV}, {srd(sWS)}, s{sA} offen sc1")
    I("s_branch L_fin")
    a.label("L_pub_stats")
    I(f"v_and_b32 v{vT1}, 1, v{vL}"); I(f"v_lshlrev_b32 v{vT2}, 5, v{vT1}")
    I(f"ds_read_b128 {v4(VB0)}, v{vT2} offset:{L_L}"); I(f"ds_read_b128 {v4(VB0+4)}, v{vT2} offset:{L_L+16}")
    I(f"v_lshlrev_b32 v{vT1}, 3, v{vT1}")
    I(f"v_mov_b32 v{VB0+8}, v{vM}")
    I("s_waitcnt lgkmcnt(0)")
    I(f"v_pk_add_f32 v[{VB0}:{VB0+1}], v[{VB0}:{VB0+1}], v[{VB0+4}:{VB0+5}]")
    I(f"v_pk_add_f32 v[{VB0+2}:{VB0+3}], v[{VB0+2}:{VB0+3}], v[{VB0+6}:{VB0+7}]")
    I(f"v_pk_add_f32 v[{VB0}:{VB0+1}], v[{VB0}:{VB0+1}], v[{VB0+2}:{VB0+3}]")
    I(f"v_add_f32 v{VB0+9}, v{VB0}, v{VB0+1}")
    I("s_mov_b64 exec, 3")
    I(f"buffer_store_dwordx2 v[{VB0+8}:{VB0+9}], v{vT1}, {srd(sWS)}, s{sA} offen offset:1024 sc1")
    I("s_branch L_fin")
    a.label("L_tail_roles")
    I(f"s_cmp_eq_u32 s{sROLE}, 1"); I("s_cbranch_scc1 L_cons")
    I(f"s_cmp_eq_u32 s{sROLE}, 3"); I("s_cbranch_scc1 L_red")
    I("s_branch L_fin")
    a.label("L_cons")
    CA = WR + 32
    OD = VB0
    SD = PR
    I(f"v_add_u32 v{vT1}, s{sSTR}, v{vV}")
    for j in range(8): I(f"ds_read_b128 {v4(CA+4*j)}, v{vT1} offset:{j*1024}")
    I(f"v_lshrrev_b32 v{vT4}, 4, v{vL}"); I(f"v_lshlrev_b32 v{vT4}, 7, v{vT4}"); I(f"v_lshl_add_u32 v{vT4}, v{vB8}, 4, v{vT4}")
    I(f"s_mul_i32 s{sD_}, s{sCG}, {8*18432}"); I(f"s_lshl_b32 s{sA}, s{sSIG}, 9"); I(f"s_add_u32 s{sD_}, s{sD_}, s{sA}"); I(f"s_add_u32 s{sD_}, s{sD_}, {WS_P}")
    I(f"s_cmp_ge_u32 s{sSIG}, 32"); I("s_cbranch_scc1 L_cons_st")
    I(f"s_mov_b64 s[{sM0}:{sM0+1}], -1"); I(f"s_mov_b64 s[{sM1}:{sM1+1}], -1")
    I(f"s_mov_b32 s{sSPIN}, {spin}")
    a.label("L_cpoll")
    for s, sm in ((0, sM0), (1, sM1)):
        I(f"s_mov_b64 exec, s[{sm}:{sm+1}]")
        I(f"s_cbranch_execz L_cskip{s}")
        I(f"buffer_load_dwordx2 v[{SD+2*s}:{SD+2*s+1}], v{vS}, {srd(sWS)}, 0 offen offset:{s*2048+1024} sc1")
        for i in range(2):
            for hh in range(2):
                I(f"buffer_load_dwordx4 {v4(OD+16*s+8*i+4*hh)}, v{vO}, {srd(sWS)}, 0 offen offset:{s*2048+i*256+hh*16} sc1")
        a.label(f"L_cskip{s}")
    I("s_mov_b64 exec, -1")
    I("s_waitcnt vmcnt(0)")
    for s, t in ((0, vT0), (1, vT1)):
        I(f"v_max_u32 v{t}, v{SD+2*s}, v{SD+2*s+1}")
    for k in range(8):
        for s, t in ((0, vT0), (1, vT1)):
            I(f"v_max3_u32 v{t}, v{OD+16*s+2*k}, v{OD+16*s+2*k+1}, v{t}")
    I(f"v_cmp_eq_u32_e64 s[{sM0}:{sM0+1}], v{vT0}, -1"); I(f"v_cmp_eq_u32_e64 s[{sM1}:{sM1+1}], v{vT1}, -1")
    I(f"s_or_b64 vcc, s[{sM0}:{sM0+1}], s[{sM1}:{sM1+1}]")
    I("s_cbranch_scc0 L_cok")
    I(f"s_sub_u32 s{sSPIN}, s{sSPIN}, 1"); I("s_cbranch_scc1 L_cok")
    I("s_sleep 2")
    I("s_branch L_cpoll")
    a.label("L_cok")
    stamp(6)
    I(f"v_max_f32 v{vT0}, v{SD}, v{SD+2}")
    I(f"v_sub_f32 v{vT1}, v{SD}, v{vT0}"); I(f"v_sub_f32 v{vT2}, v{SD+2}, v{vT0}")
    I(f"v_exp_f32 v{vT1}, v{vT1}"); I(f"v_exp_f32 v{vT2}, v{vT2}")
    I(f"v_mul_f32 v{vT0}, v{vT1}, v{SD+1}"); I(f"v_fmac_f32 v{vT0}, v{vT2}, v{SD+3}")
    I(f"v_rcp_f32 v{vT0}, v{vT0}")
    I(f"v_mul_f32 v{vT0}, v{vT0}, v{vG}")
    I(f"v_mul_f32 v{vT1}, v{vT1}, v{vT0}"); I(f"v_mul_f32 v{vT2}, v{vT2}, v{vT0}")
    for k in range(16): I(f"v_mul_f32 v{OD+k}, v{OD+k}, v{vT1}")
    for k in range(16): I(f"v_fmac_f32 v{OD+k}, v{OD+16+k}, v{vT2}")
    for k in range(8): I(f"v_cvt_pk_bf16_f32 v{QF+k}, v{OD+2*k}, v{OD+2*k+1}")
    I("s_waitcnt lgkmcnt(0)")
    for i, F in ((0, ACC2), (1, WR)):
        for j in range(8):
            I(f"v_mfma_f32_16x16x32_bf16 {v4(CA+4*j)}, {v4(F+4*j)}, {v4(QF+4*i)}, {v4(CA+4*j)}")
    a.label("L_cons_st")
    I("s_waitcnt lgkmcnt(0)")
    I(f"s_mov_b32 exec_lo, 0x00ff00ff"); I(f"s_mov_b32 exec_hi, 0xff00ff00")
    for j in range(8):
        I(f"buffer_store_dwordx4 {v4(CA+4*j)}, v{vT4}, {srd(sWS)}, s{sD_} offen sc1")
        if j < 7: I(f"s_add_u32 s{sD_}, s{sD_}, 18432")
    I("s_branch L_fin")
    a.label("L_red")
    RD = HI
    I(f"v_bfe_u32 v{vT0}, v{vL}, 4, 1"); I(f"v_lshlrev_b32 v{vT0}, 4, v{vT0}")
    I(f"v_bfe_u32 v{vT1}, v{vL}, 5, 1"); I(f"v_lshl_or_b32 v{vT0}, v{vT1}, 3, v{vT0}")
    I(f"v_bfe_u32 v{vT1}, v{vL}, 3, 1"); I(f"v_lshl_or_b32 v{vT0}, v{vT1}, 5, v{vT0}")
    I(f"s_lshr_b32 s{sA}, s2, 3"); I(f"s_lshl_b32 s{sA}, s{sA}, 6"); I(f"s_and_b32 s{sB}, s2, 7"); I(f"s_add_u32 s{sA}, s{sA}, s{sB}")
    I(f"v_add_u32 v{vT0}, s{sA}, v{vT0}"); I(f"v_lshlrev_b32 v{vT0}, 1, v{vT0}")
    mk_srd(sT, pB2, 1152)
    I(f"buffer_load_ushort v{vT5}, v{vT0}, {srd(sT)}, 0 offen")
    I(f"v_mul_u32_u24 v{vT4}, 1152, v{vB8}"); I(f"v_add_u32 v{vT4}, v{vT4}, v{vT0}")
    mk_srd(sX, pOUT, 8 * 1152)
    I(f"s_mul_i32 s{sA}, s2, 18432"); I(f"s_add_u32 s{sA}, s{sA}, {WS_P}")
    for k in range(5): I(f"s_add_u32 s{sU+k}, s{sA}, {k*4096}")
    I(f"s_mov_b32 s{sE}, 0x3ffff")
    I(f"s_mov_b32 s{sSPIN}, {spin}")
    a.label("L_rpoll")
    for n in range(18):
        I(f"s_bitcmp1_b32 s{sE}, {n}"); I(f"s_cbranch_scc0 L_rs{n}")
        I(f"buffer_load_dwordx4 {v4(RD+4*n)}, v{vV}, {srd(sWS)}, s{sU+(n>>2)} offen offset:{(n&3)*1024} sc1")
        a.label(f"L_rs{n}")
    I("s_waitcnt vmcnt(0)")
    for n in range(18):
        I(f"s_bitcmp1_b32 s{sE}, {n}"); I(f"s_cbranch_scc0 L_rc{n}")
        r = RD + 4 * n
        I(f"v_max_u32 v{vT0}, v{r}, v{r+1}"); I(f"v_max3_u32 v{vT0}, v{r+2}, v{r+3}, v{vT0}")
        I(f"v_cmp_eq_u32 vcc, -1, v{vT0}")
        I(f"s_cbranch_vccnz L_rc{n}")
        I(f"s_bitset0_b32 s{sE}, {n}")
        a.label(f"L_rc{n}")
    I(f"s_cmp_eq_u32 s{sE}, 0"); I("s_cbranch_scc1 L_rok")
    I(f"s_sub_u32 s{sSPIN}, s{sSPIN}, 1"); I("s_cbranch_scc1 L_rok")
    I("s_sleep 2")
    I("s_branch L_rpoll")
    a.label("L_rok")
    stamp(6)
    idx = list(range(18))
    while len(idx) > 1:
        half = len(idx) // 2
        for k in range(half):
            x, y = RD + 4 * idx[k], RD + 4 * idx[len(idx) - 1 - k]
            I(f"v_pk_add_f32 v[{x}:{x+1}], v[{x}:{x+1}], v[{y}:{y+1}]"); I(f"v_pk_add_f32 v[{x+2}:{x+3}], v[{x+2}:{x+3}], v[{y+2}:{y+3}]")
        idx = idx[:len(idx) - half]
    I(f"v_sub_f32 v{vT1}, 1.0, v{vG}"); I(f"v_lshlrev_b32 v{vT5}, 16, v{vT5}")
    I(f"v_permlane32_swap_b32 v{RD}, v{RD+1}"); I(f"v_permlane32_swap_b32 v{RD+2}, v{RD+3}")
    I(f"v_add_f32 v{RD}, v{RD}, v{RD+1}"); I(f"v_add_f32 v{RD+2}, v{RD+2}, v{RD+3}")
    I(f"v_permlane16_swap_b32 v{RD}, v{RD+2}")
    I(f"v_add_f32 v{RD}, v{RD}, v{RD+2}")
    I(f"v_fmac_f32 v{RD}, v{vT1}, v{vT5}")
    I(f"v_cvt_pk_bf16_f32 v{RD}, v{RD}, v{RD}")
    I(f"buffer_store_short v{RD}, v{vT4}, {srd(sX)}, 0 offen")
    a.label("L_fin")
    if ts:
        I("s_mov_b64 exec, -1")
        I("s_waitcnt vmcnt(0)")
        stamp(7)
        I("s_waitcnt lgkmcnt(0)")
        for i in range(16): I(f"v_mov_b32 v{VB0+i}, s{sTS+i}")
        I(f"s_lshl_b32 s{sA}, s2, 3"); I(f"s_add_u32 s{sA}, s{sA}, s{sWAVE}"); I(f"s_lshl_b32 s{sA}, s{sA}, 6"); I(f"s_add_u32 s{sA}, s{sA}, {WS_TS}")
        I("s_mov_b64 exec, 1")
        for i in range(4):
            I(f"buffer_store_dwordx4 {v4(VB0+4*i)}, off, {srd(sWS)}, s{sA} offset:{16*i}")
    a.label("L_end")
    I("s_endpgm")
    a.raw('.section .rodata,"a"'); a.raw(".p2align 6"); a.raw(f".amdhsa_kernel {NAME}_kernel")
    a.raw("  .amdhsa_next_free_vgpr 256"); a.raw("  .amdhsa_next_free_sgpr 102"); a.raw("  .amdhsa_accum_offset 256")
    a.raw("  .amdhsa_group_segment_fixed_size 0"); a.raw("  .amdhsa_kernarg_size 112"); a.raw("  .amdhsa_user_sgpr_count 2")
    a.raw("  .amdhsa_user_sgpr_kernarg_segment_ptr 1"); a.raw("  .amdhsa_system_sgpr_workgroup_id_x 1")
    a.raw("  .amdhsa_float_denorm_mode_32 3")
    a.raw(".end_amdhsa_kernel")
    return a.text()

if __name__ == "__main__":
    out = sys.argv[1]
    kw = json.loads(sys.argv[2]) if len(sys.argv) > 2 else {}
    open(out, "w").write(gen(**kw))
```
